```python
import torch

def _softmax(x, axis=-1):
    return torch.softmax(x, dim=axis)
def _gelu(x):
    return torch.nn.functional.gelu(x, approximate="tanh")
def _silu(x):
    return torch.nn.functional.silu(x)
def _sigmoid(x):
    return torch.sigmoid(x)
def _layernorm(x, axis=-1, eps=1e-5):
    m = x.mean(dim=axis, keepdim=True)
    v = x.var(dim=axis, keepdim=True, unbiased=False)
    return (x - m) / torch.sqrt(v + eps)
def _scatter_add(tgt, idx, src, axis=0):
    return tgt.clone().index_add_(axis, idx, src)
def _segment_sum(src, seg, n):
    out = torch.zeros((n,) + src.shape[1:], dtype=src.dtype)
    return out.index_add_(0, seg, src)
def _pad(x, pw):
    flat = tuple(v for pair in reversed(pw) for v in pair)
    return torch.nn.functional.pad(x, flat)

kernel_name = 'gated_mix__sliding_local_dilated__dense_activation_gelu__prompt'

def setup_inputs():

    _w = (lambda a: (lambda t: t.to(torch.bfloat16) if t.is_floating_point() else t)(torch.as_tensor(a)))
    def _A_setup():
        B, S, D = 1, 2048, 512
        return {
            "x": _w((lambda *s: torch.randn(*s, dtype=torch.bfloat16) * 0.05)(B, S, D)),
            "wqkv": _w((lambda *s: torch.randn(*s, dtype=torch.bfloat16) * 0.8)(D, 3 * D)),
            "wo": _w((lambda *s: torch.randn(*s, dtype=torch.bfloat16) * 0.05)(D, D)),
        }
    _A_in = _A_setup()

    def _B_setup():
        B, S, D, F = 1, 2048, 512, 1792
        return {
            "x": _w((lambda *s: torch.randn(*s, dtype=torch.bfloat16) * 0.05)(B, S, D)),
            "w1": _w((lambda *s: torch.randn(*s, dtype=torch.bfloat16) * 12.8)(D, F) * (D ** -0.5)),
            "b1": _w((lambda *s: torch.randn(*s, dtype=torch.bfloat16) * 12.8)(F) * 0.01),
            "w2": _w((lambda *s: torch.randn(*s, dtype=torch.bfloat16) * 1.6)(F, D) * (F ** -0.5)),
            "b2": _w((lambda *s: torch.randn(*s, dtype=torch.bfloat16) * 12.8)(D) * 0.01),
        }
    _B_in = _B_setup()

    return {
        "A_x": _A_in["x"],
        "A_wqkv": _A_in["wqkv"],
        "A_wo": _A_in["wo"],
        "B_x": _B_in["x"],
        "B_w1": _B_in["w1"],
        "B_b1": _B_in["b1"],
        "B_w2": _B_in["w2"],
        "B_b2": _B_in["b2"],
        "gate_w": _w((lambda *s: torch.randn(*s, dtype=torch.bfloat16) * 0.05)(512) * 16.0),
    }

def reference(A_x, A_wqkv, A_wo, B_x, B_w1, B_b1, B_w2, B_b2, gate_w):
    def _A_ref(x, wqkv, wo):
        B, S, D = x.shape
        H = 32; Dh = D // H
        W, dil = 8, 2
        qkv = (lambda x, *d: x.permute(*d))((x @ wqkv).reshape(B, S, 3, H, Dh), 2, 0, 3, 1, 4)
        q, k, v = qkv[0], qkv[1], qkv[2]
        scale = Dh ** -0.5
        pos = torch.arange(S)
        off = torch.arange(W) * dil
        idx = pos[:, None] - off[None, :]
        mask = idx >= 0
        idx_c = torch.where(mask, idx, 0).reshape(-1)
        kg = k[:, :, idx_c, :].reshape(B, H, S, W, Dh)
        vg = v[:, :, idx_c, :].reshape(B, H, S, W, Dh)
        logits = torch.einsum("bhsd,bhswd->bhsw", q, kg) * scale
        logits = torch.where(mask[None, None, :, :], logits, -1e9)
        attn = _softmax(logits, axis=-1)
        o = torch.einsum("bhsw,bhswd->bhsd", attn, vg)
        return (lambda x, *d: x.permute(*d))(o, 0, 2, 1, 3).reshape(B, S, D) @ wo

    def _B_ref(x, w1, b1, w2, b2):
        h = torch.einsum("bsd,df->bsf", x, w1) + b1
        h = _gelu(h)
        return torch.einsum("bsf,fd->bsd", h, w2) + b2

    x = A_x
    g = _sigmoid((x * gate_w).sum(-1, keepdims=True))
    a = _A_ref(x, A_wqkv, A_wo)
    b = _B_ref(x, B_w1, B_b1, B_w2, B_b2)
    return g * a + (1 - g) * b
```

```python
NAME = "gated_mix__sliding_local_dilated__dense_activation_gelu__prompt"
HEADER = open("cdna_kernels/" + NAME + ".s.ref").read().split("; Override launch")[0]

class Asm:
    def __init__(self):
        self.lines = []
        self.nlabel = 0
    def __call__(self, s):
        for l in s.strip("\n").split("\n"):
            l = l.strip()
            if not l: continue
            if l.endswith(":") or l.startswith("."): self.lines.append(l)
            else: self.lines.append("    " + l)
    def label(self, base="L"):
        self.nlabel += 1
        return f"{base}_{self.nlabel}"
    def srd(self, d, base, nbytes):
        self(f"s_mov_b32 s{d}, s{base}\ns_mov_b32 s{d+1}, s{base+1}\ns_mov_b32 s{d+2}, {nbytes}\ns_mov_b32 s{d+3}, 0x00020000")
    def text(self):
        return "\n".join(self.lines) + "\n"

def kernel_begin(name):
    return f".globl {name}\n.p2align 8\n.type {name},@function\n{name}:\n"

def kernel_desc(name, vgpr, accum, sgpr=102, extra=""):
    return (f".amdhsa_kernel {name}\n  .amdhsa_next_free_vgpr {vgpr}\n  .amdhsa_next_free_sgpr {sgpr}\n"
            f"  .amdhsa_accum_offset {accum}\n  .amdhsa_group_segment_fixed_size 0\n  .amdhsa_kernarg_size 96\n"
            f"  .amdhsa_user_sgpr_count 2\n  .amdhsa_user_sgpr_kernarg_segment_ptr 1\n"
            f"  .amdhsa_system_sgpr_workgroup_id_x 1\n{extra}.end_amdhsa_kernel\n")

def make_file(launch_lines, kernels):
    s = HEADER + "".join(l + "\n" for l in launch_lines)
    s += '.amdgcn_target "amdgcn-amd-amdhsa--gfx950"\n.text\n'
    for name, body, vgpr, accum in kernels:
        s += kernel_begin(name) + body
    s += '.section .rodata,"a"\n'
    for name, body, vgpr, accum in kernels:
        s += ".p2align 6\n" + kernel_desc(name, vgpr, accum)
    return s

class Stamps:
    def __init__(self, a, base_sgpr, n, enabled=True):
        self.a, self.b, self.n, self.en = a, base_sgpr, n, enabled
    def start(self):
        if not self.en: return
        a, b = self.a, self.b
        for j in range(self.n): a(f"s_mov_b32 s{b+4+j}, 0")
        a(f"s_memrealtime s[{b}:{b+1}]\ns_memtime s[{b+2}:{b+3}]\ns_waitcnt lgkmcnt(0)\ns_mov_b32 s{b+4}, s{b}\ns_mov_b32 s{b+6}, s{b+2}")
    def stamp(self, j):
        if not self.en: return
        b = self.b
        self.a(f"s_memtime s[{b+2}:{b+3}]\ns_waitcnt lgkmcnt(0)\ns_or_b32 s{b+4+j}, s{b+2}, 1")
    def finish(self, ws_srd, slot_sgpr, off, v0, v1):
        if not self.en: return
        a, b = self.a, self.b
        a(f"s_memrealtime s[{b}:{b+1}]\ns_waitcnt lgkmcnt(0)\ns_mov_b32 s{b+5}, s{b}")
        a(f"s_mul_i32 s{b}, s{slot_sgpr}, {self.n*4}\ns_add_u32 s{b}, s{b}, {off}\nv_mov_b32 v{v0}, s{b}")
        a("s_mov_b64 exec, 1")
        for j in range(self.n):
            a(f"v_mov_b32 v{v1}, s{b+4+j}\nbuffer_store_dword v{v1}, v{v0}, s[{ws_srd}:{ws_srd+3}], 0 offen offset:{4*j}")
        a("s_waitcnt vmcnt(0)")
```

```python
import struct
from asmlib import *

def fbits(x): return "0x%08x" % struct.unpack("<I", struct.pack("<f", x))[0]

SLOT = 49152
LDS_GW, LDS_EX, LDS_G = 147456, 149504, 157696
FR = 147456
WS_G, WS_F, WS_SIZE = 0x900000, 0x910000, 0x1000000
WS_FA = WS_F + 4096
OOB = 0x80000000
SX, SW, SB, SWS, SO, SM, SD = 28, 32, 36, 40, 44, 48, 52
sP, sQ, sSlot, sC, sR, sJ0, sKX, sKW, sWL, sW6, sSpin, sJ2, sCT, sRot, sSwap, sPub, sI, sFR, sA0, sA1 = range(56, 76)
t0, t1, t2, t3, t4, t5 = range(76, 82)
STB = 84
vBG, vBR, vST, vEP = 1, 2, 6, 7
vTA, vTB, vF1, vF2, vA0, vA1, vOC, vE = range(248, 256)
BREG = 104
BREGION = [2 * SLOT, 0, SLOT]

class VM:
    def __init__(self, a): self.a, self.q = a, []
    def op(self, tag, n=1): self.q += [tag] * n
    def cnt(self, tag):
        idx = max(i for i, t in enumerate(self.q) if t == tag)
        n = len(self.q) - 1 - idx
        self.q = self.q[idx + 1:]
        return n
    def wait(self, tag):
        if tag in self.q: self.a(f"s_waitcnt vmcnt({self.cnt(tag)})")
    def wait_all(self): self.a("s_waitcnt vmcnt(0)"); self.q = []

def b_dma(rnd):
    g = []
    for i in range(3):
        t = 3 * rnd + i; l = BREGION[rnd % 3] + i * 2048
        g.append((f"v_readlane_b32 s{t4}, v{vTB}, {t}\ns_add_u32 m0, s{sW6}, {l}\ns_bitcmp1_b32 s{t4}, 0\n"
                  f"s_cselect_b32 s{SB}, s8, s16\ns_cselect_b32 s{SB+1}, s9, s17\ns_and_b32 s{t5}, s{t4}, -2",
                  f"buffer_load_dwordx4 v{vBG}, s[{SB}:{SB+3}], s{t5} offen lds"))
        g.append((f"s_add_u32 m0, s{sW6}, {l+1024}\ns_add_u32 s{t5}, s{t5}, 8192",
                  f"buffer_load_dwordx4 v{vBG}, s[{SB}:{SB+3}], s{t5} offen lds"))
    return g

def b_reads(rnd, shift=0):
    g = []
    for i in range(3):
        t = (3 * rnd + i + shift) % 18
        for ct in range(2):
            for e in range(2):
                off = BREGION[rnd % 3] + i * 2048 + e * 512; v = vBR + ct
                if off >= 65536: off -= 65536; v += 2
                d = BREG + 8 * t + 4 * ct + 2 * e
                g.append(f"ds_read_b64_tr_b16 v[{d}:{d+1}], v{v} offset:{off}")
    return g

def mod7(a, dst_ct, dst_jj, src):
    a(f"""s_cmp_ge_u32 s{src}, 7
        s_cselect_b32 s{dst_jj}, 1, 0
        s_cselect_b32 s{t3}, 7, 0
        s_sub_u32 s{dst_ct}, s{src}, s{t3}
        s_cmp_ge_u32 s{dst_ct}, 3
        s_addc_u32 s{dst_ct}, s{dst_ct}, 0""")

def late_setup(a, rot, fs):
    a.srd(SWS, 26, WS_SIZE); a.srd(SO, 22, 2097152); a.srd(SD, 24, 256)
    a(f"""s_mov_b32 s{SB}, s16
        s_mov_b32 s{SB+1}, s17
        s_mov_b32 s{SB+2}, 1835008
        s_mov_b32 s{SB+3}, 0x00020000
        s_lshl_b32 s{t1}, s{sQ}, 2
        s_add_u32 s{sJ2}, s{sJ2}, s{t1}
        s_lshl_b32 s{sJ2}, s{sJ2}, 6
        s_and_b32 s{sI}, s3, 3
        s_mov_b32 s{sFR}, {FR}
        s_lshl_b32 s{t2}, s{sCT}, 7
        v_lshlrev_b32 v14, 2, v13
        v_xor_b32 v14, v14, v9
        v_lshlrev_b32 v14, 4, v14
        v_lshl_add_u32 v14, v8, 10, v14
        v_add_u32 v{vBG}, s{t2}, v14
        v_lshl_add_u32 v{vOC}, v9, 4, s{t2}
        v_lshrrev_b32 v14, 5, v0
        v_bfe_u32 v15, v0, 2, 2
        v_lshl_add_u32 v14, v14, 3, v15
        v_lshlrev_b32 v14, 7, v14
        v_lshrrev_b32 v15, 1, v15
        v_lshl_add_u32 v14, v15, 6, v14
        v_lshl_add_u32 v14, v13, 5, v14
        v_and_b32 v15, 3, v0
        v_lshl_add_u32 v16, v15, 3, v14
        v_add_u32 v{vBR}, s{sW6}, v16
        v_xor_b32 v{vBR+1}, 64, v{vBR}
        v_add_u32 v{vBR+2}, 0x10000, v{vBR}
        v_add_u32 v{vBR+3}, 0x10000, v{vBR+1}
        s_lshl_b32 s{t1}, s{sP}, 5
        s_lshr_b32 s{t2}, s{sJ2}, 5
        s_add_u32 s{t1}, s{t1}, s{t2}
        s_mul_i32 s{t1}, s{t1}, s{sFR}
        v_lshl_add_u32 v{vA0}, v0, 4, s{t1}
        v_add_u32 v{vA1}, s{sFR}, v{vA0}""")
    a(f"""s_cmp_lt_u32 s3, 4
        s_cselect_b32 s{t0}, 8, 4
        s_cselect_b32 s{t1}, 10, 14
        s_cselect_b32 s{t4}, 0, 72
        s_cselect_b32 s{t5}, 32, 88
        s_mul_i32 s{t2}, s{sI}, s{t0}
        s_add_u32 s{t2}, s{t2}, s{t4}
        s_mul_i32 s{t3}, s{sI}, s{t1}
        s_add_u32 s{t3}, s{t3}, s{t5}
        s_mul_i32 s{t4}, s{sCT}, s{t0}
        s_lshr_b32 s{t4}, s{t4}, {3 if rot else 8}
        s_mul_i32 s{t5}, s{sCT}, s{t1}
        s_lshr_b32 s{t5}, s{t5}, {3 if rot else 8}
        s_sub_u32 s{t5}, s{t5}, s{t0}""")
    def table(dst, lane):
        a(f"""v_add_u32 v17, s{t4}, v{lane}
            v_subrev_u32 v18, s{t0}, v17
            v_min_u32 v17, v17, v18
            v_add_u32 v17, s{t2}, v17
            v_add_u32 v18, s{t5}, v{lane}
            v_subrev_u32 v19, s{t1}, v18
            v_min_u32 v18, v18, v19
            v_cmp_gt_u32 vcc, s{t0}, v{lane}
            v_add_u32 v18, s{t3}, v18
            s_nop 0
            v_cndmask_b32 v{dst}, v18, v17, vcc""")
    a("v_min_u32 v16, 17, v0")
    table(vTA, 16)
    a(f"""v_add_u32 v16, s{sSwap}, v16
        v_subrev_u32 v17, 18, v16
        v_min_u32 v16, v16, v17""")
    table(20, 16)
    a(f"""v_lshlrev_b32 v{vTA}, 10, v{vTA}
        v_subrev_u32 v17, 32, v20
        v_subrev_u32 v18, 56, v17
        v_cmp_le_u32 vcc, 56, v17
        v_min_u32 v17, v17, v18
        v_and_b32 v18, -8, v17
        v_cndmask_b32 v19, 0, 8, vcc
        v_add3_u32 v17, v17, v18, v19
        v_cmp_gt_u32 vcc, 32, v20
        v_lshlrev_b32 v17, 14, v17
        v_lshl_or_b32 v18, v20, 14, 1
        v_cndmask_b32 v{vTB}, v17, v18, vcc""")
    a(f"""s_lshl_b32 s{t4}, s{sP}, 4
        s_lshr_b32 s{t5}, s{sJ2}, 6
        s_add_u32 s{t4}, s{t4}, s{t5}
        s_lshl_b32 s{t4}, s{t4}, 5
        s_mul_i32 s{t2}, s{sI}, s{t1}
        s_add_u32 s{t3}, s{t2}, s{t1}
        s_sub_u32 s{t3}, s{t3}, 1
        s_lshr_b32 s{t2}, s{t2}, 2
        s_lshr_b32 s{t3}, s{t3}, 2
        v_add_u32 v17, s{t2}, v15
        v_min_u32 v17, s{t3}, v17
        s_and_b32 s{t5}, s3, 4
        s_lshl_b32 s{t5}, s{t5}, 2
        s_add_u32 s{t5}, s{t5}, s{t4}
        v_add_u32 v17, s{t5}, v17
        v_lshlrev_b32 v17, {fs}, v17
        v_add_u32 v{vF2}, {WS_F}, v17
        s_add_u32 s{t4}, s{t4}, s{sI}
        s_add_u32 s{t4}, s{t4}, 10
        s_lshl_b32 s{t4}, s{t4}, {fs}
        s_add_u32 s{t4}, s{t4}, {WS_F}
        v_bfe_u32 v17, v0, 3, 1
        v_mul_u32_u24 v17, 48, v17
        v_add_u32 v17, s{sJ2}, v17
        v_subrev_u32 v18, 16, v17
        v_max_i32 v18, 0, v18
        v_mul_u32_u24 v18, 586, v18
        v_lshrrev_b32 v18, 16, v18
        v_mul_u32_u24 v19, 112, v18
        v_sub_u32 v17, v17, v19
        v_lshrrev_b32 v17, 6, v17
        v_lshl_add_u32 v17, v18, 1, v17
        s_mul_i32 s{t2}, s{sP}, 18
        v_add_u32 v17, s{t2}, v17
        s_lshl_b32 s{t2}, s{sI}, 3
        v_add_u32 v18, s{t2}, v9
        v_cmp_eq_u32 vcc, 0, v13
        v_lshlrev_b32 v17, 5, v17
        s_nop 0
        v_cndmask_b32 v18, v15, v18, vcc
        v_add_u32 v17, v17, v18
        v_lshlrev_b32 v17, {fs}, v17
        v_add_u32 v17, {WS_F+(1024<<fs)}, v17
        s_cmp_lt_u32 s3, 4
        s_cselect_b64 vcc, -1, 0
        v_mov_b32 v18, s{t4}
        v_cndmask_b32 v{vF1}, v18, v17, vcc""")
```

```python
from g2a import *
vX, vX2, vW = 33, 34, 35
LDS_E = LDS_G + 256
LOG2E = 1.4426950408889634

def attention(a, st, L):
    from gen2 import weave
    emit, bd, br = L["emit"], L["bd"], L["br"]; npre, swap = L["npre"], L["swap"]
    a("L_attn:")
    vm = VM(a)
    a(f"""s_sub_u32 s{sR}, s{sSlot}, 14
        s_lshl_b32 s{sC}, s{sQ}, 1
        s_sub_u32 s{t1}, s{sR}, 9
        s_cmp_ge_u32 s{sR}, 9
        s_cselect_b32 s{sR}, s{t1}, s{sR}
        s_addc_u32 s{sC}, s{sC}, 0
        s_mul_i32 s{sJ0}, s{sR}, 112
        s_lshl_b32 s{t1}, s{t0}, 1
        v_or_b32 v14, s{t1}, v13
        v_lshlrev_b32 v14, 1, v14
        v_xor_b32 v14, v14, v9
        v_lshlrev_b32 v14, 4, v14
        s_movk_i32 s{t1}, 3072
        v_mad_u32_u24 v{vW}, v12, s{t1}, v14
        s_lshl_b32 s{t1}, s{sC}, 7
        v_add_u32 v{vW}, s{t1}, v{vW}
        v_lshlrev_b32 v21, 4, v0""")
    L["x_setup"](3072)
    L["srds"](6, 1572864, 20, 1024)
    D = [L["d_dma"](s, 3, 1024, 3072) for s in range(8)]
    a(f"""s_cmp_ge_u32 s3, 2
        s_cbranch_scc1 L_ngw
        s_add_u32 m0, s{sWL}, {LDS_GW}
        s_nop 0
        buffer_load_dwordx4 v21, s[{SM}:{SM+3}], 0 offen lds
        L_ngw:""")
    emit(vm, D[0])
    if L["pbar"]: a("s_barrier")
    emit(vm, D[1][:npre])
    st.stamp(3)
    a(f"s_sub_u32 s{t0}, s{sSlot}, 18")
    mod7(a, sCT, sJ2, t0)
    a(f"""s_add_u32 s{sJ2}, s{sJ2}, 2
        s_sub_u32 s{t0}, s{sSlot}, 14
        s_cmp_lt_u32 s{sSlot}, 18
        s_cselect_b32 s{sCT}, 3, s{sCT}
        s_cselect_b32 s{sJ2}, s{t0}, s{sJ2}""")
    L["set_shift"]()
    late_setup(a, L["rot"], L["fs"])
    L["ep_addr"]()
    a(f"""s_lshr_b32 s{t3}, s3, 2
        v_and_b32 v17, 15, v0
        v_lshrrev_b32 v18, 1, v17
        v_xor_b32 v18, v18, v10
        v_lshlrev_b32 v18, 4, v18
        v_lshl_add_u32 v18, v17, 7, v18
        s_lshl_b32 s{t1}, s{t3}, 13
        v_add_u32 v21, s{t1}, v18
        v_xor_b32 v22, 64, v21
        s_lshl_b32 s{t1}, s3, 11
        v_add_u32 v23, s{t1}, v18
        v_xor_b32 v24, 64, v23
        v_bfe_u32 v18, v0, 2, 2
        v_lshl_add_u32 v19, v10, 3, v18
        v_lshlrev_b32 v19, 7, v19
        v_lshrrev_b32 v18, 1, v18
        v_lshl_add_u32 v18, v13, 1, v18
        v_xor_b32 v18, s{sI}, v18
        v_lshl_add_u32 v19, v18, 5, v19
        v_lshl_add_u32 v19, v15, 3, v19
        v_add_u32 v29, 16384, v19
        v_add_u32 v30, {SLOT}, v29
        v_add_u32 v31, {2*SLOT}, v29
        s_lshl_b32 s{t1}, s{sRot}, 7
        s_add_u32 s{t1}, s{t1}, {LDS_GW}
        v_lshl_add_u32 v32, v10, 4, s{t1}
        s_mul_i32 s{t1}, s{sP}, 9
        s_add_u32 s{t1}, s{t1}, s{sR}
        s_lshl_b32 s{t1}, s{t1}, 1
        s_add_u32 s{t1}, s{t1}, s{t3}
        s_lshl_b32 s{t1}, s{t1}, 3
        s_add_u32 s{t1}, s{t1}, s{sC}
        s_lshl_b32 s{t1}, s{t1}, 2
        s_add_u32 s{t1}, s{t1}, s{sI}
        s_lshl_b32 s{t1}, s{t1}, {L['fs']}
        s_add_u32 s{sPub}, s{t1}, {WS_F+(1024<<L['fs'])}
        v_lshlrev_b32 v18, 2, v10
        v_sub_u32 v17, v17, v18
        v_mov_b32 v38, {fbits(-1e30)}
        s_cmp_lt_u32 s3, 4
        s_cselect_b32 s{t3}, 64, -8""")
    for i in range(4): a(f"v_add_u32 v{25+i}, {2*SLOT}, v{21+i}")
    for r in range(4):
        a(f"""v_subrev_u32 v18, {r}, v17
            v_cmp_gt_u32 vcc, 8, v18
            v_sub_u32 v19, 0, v18
            s_nop 0
            v_cndmask_b32 v{92+r}, v38, 0, vcc
            v_cndmask_b32 v{8+r}, 0, -1, vcc
            v_cmp_gt_i32 vcc, -8, v18
            s_nop 1
            v_cndmask_b32 v{96+r}, v38, 0, vcc
            v_cmp_lt_i32 vcc, s{t3}, v19
            s_nop 1
            v_cndmask_b32 v{100+r}, v38, v{96+r}, vcc""")
    a("v_alignbit_b32 v36, v9, v8, 16\nv_alignbit_b32 v37, v11, v10, 16")
    def a_reads(s, kk):
        if s >= 8: return []
        B = BREG + 36 * (2 * (s & 1) + kk); g = []; sl = s % 3
        o = SLOT if sl == 1 else 0; r = 25 if sl == 2 else 21
        for t in range(3):
            for e in range(2):
                d = B + 16 + 4 * t + 2 * e
                g.append(f"ds_read_b64_tr_b16 v[{d}:{d+1}], v{29+sl} offset:{t*8192+kk*4096+e*512}")
            if t < 2:
                for tl in (2 * t, 2 * t + 1):
                    g.append(f"ds_read_b128 v[{B+4*tl}:{B+4*tl+3}], v{r+kk} offset:{o+tl*2048}")
        g.append(f"ds_read_b128 v[{B+28}:{B+31}], v{r+2+kk} offset:{o}")
        g.append(f"ds_read_b128 v[{B+32}:{B+35}], v32 offset:{s*128+kk*64}")
        return g
    def a_mfma(s, kk):
        B = BREG + 36 * (2 * (s & 1) + kk); g = []; z = s + kk == 0
        for tl in range(4):
            x = f"v[{B+4*tl}:{B+4*tl+3}]"
            for t in range(3):
                c = 40 + 16 * t + 4 * tl; w = f"v[{B+16+4*t}:{B+19+4*t}]"
                ab = f"{w}, {x}" if t < 2 else f"{x}, {w}"
                g.append(f"v_mfma_f32_16x16x32_bf16 v[{c}:{c+3}], {ab}, {'0' if z else f'v[{c}:{c+3}]'}")
        g.append(f"v_mfma_f32_16x16x32_bf16 v[88:91], v[{B+32}:{B+35}], v[{B+28}:{B+31}], {'0' if z else 'v[88:91]'}")
        return g
    vm.wait("D0")
    a("s_barrier")
    st.stamp(4)
    for l in a_reads(0, 0): a(l)
    a("s_waitcnt lgkmcnt(3)")
    for l in a_reads(0, 1): a(l)
    for s in range(8):
        m = a_mfma(s, 0) + a_mfma(s, 1); pb = L["pb0"] if s == 0 else L["pb"]
        a("s_waitcnt lgkmcnt(12)")
        emit(vm, weave(m[:pb], D[1][npre:]) if s == 0 else m[:pb])
        a(f"s_waitcnt vmcnt({vm.cnt(f'D{s+1}')}) lgkmcnt(0)" if s < 7 else "s_waitcnt lgkmcnt(0)")
        if s == 5: L["ep_check"]("L_a")
        a("s_barrier")
        d = (D[2] + D[3] if s == 0 else D[s + 3] if s < 5 else bd(s - 5))
        if s == 3: d = [L["ep_load"]] + d
        r = a_reads(s + 1, 0) + a_reads(s + 1, 1)
        if r: r[15] = "s_waitcnt lgkmcnt(6)\n" + r[15]
        f = weave(r, d, 2, 20) if r else d
        emit(vm, weave(m[pb:], f, 1, len(m) - pb - (1 if s == 0 else 3)))
    st.stamp(5)
    QP, KP, VP = 8, 16, 26
    def b_event(r, work):
        if L["aord"] and work: work(); a("s_waitcnt lgkmcnt(0)"); return
        vm.wait(f"B{r}"); br(r, swap)
        if work: work()
        a("s_waitcnt lgkmcnt(0)"); emit(vm, bd(r + 3))
    def part0():
        a(f"""s_add_u32 s{t2}, s{sWL}, {LDS_EX}
            v_lshl_add_u32 v39, v0, 4, s{t2}
            v_mul_f32 v88, {fbits(LOG2E)}, v88
            s_mov_b32 s{t1}, {fbits(64.0)}
            v_med3_f32 v88, v88, s{t1}, -s{t1}""")
        for i in range(2): a(f"v_cvt_pk_bf16_f32 v{KP+8+i}, v{68+2*i}, v{69+2*i}")
        a("v_exp_f32 v88, v88")
        for i in range(2): a(f"v_cvt_pk_bf16_f32 v{VP+8+i}, v{84+2*i}, v{85+2*i}")
        a(f"""s_lshl_b32 s{t2}, s3, 6
            s_add_u32 s{t2}, s{t2}, {LDS_E}
            v_lshl_add_u32 v89, v0, 2, s{t2}
            s_waitcnt lgkmcnt(8)
            ds_write_b64 v39, v[{KP+8}:{KP+9}]
            ds_write_b64 v39, v[{VP+8}:{VP+9}] offset:8
            s_mov_b64 exec, 0xffff
            ds_write_b32 v89, v88
            s_mov_b64 exec, -1""")
        for tl in range(4):
            for i in range(2): a(f"v_cvt_pk_bf16_f32 v{QP+2*tl+i}, v{40+4*tl+2*i}, v{41+4*tl+2*i}")
        for tl in range(3):
            for i in range(2):
                a(f"v_cvt_pk_bf16_f32 v{KP+2+2*tl+i}, v{56+4*tl+2*i}, v{57+4*tl+2*i}")
                a(f"v_cvt_pk_bf16_f32 v{VP+2+2*tl+i}, v{72+4*tl+2*i}, v{73+4*tl+2*i}")
        a(f"""s_lshl_b32 s{t2}, s{sI}, 10
            s_add_u32 s{t2}, s{t2}, {LDS_EX}
            v_lshl_add_u32 v39, v0, 4, s{t2}
            s_and_b32 s{t2}, s3, 4
            s_lshl_b32 s{t2}, s{t2}, 6
            s_add_u32 s{t2}, s{t2}, {LDS_E}
            v_and_b32 v89, 15, v0
            v_lshl_add_u32 v89, v89, 2, s{t2}
            s_waitcnt lgkmcnt(0)
            s_barrier
            ds_read_b64 v[{KP}:{KP+1}], v39
            ds_read_b64 v[{VP}:{VP+1}], v39 offset:8""")
        for tl in range(4): a(f"ds_read_b32 v{72+tl}, v89 offset:{64*tl}")
    a("s_nop 7\ns_nop 3")
    b_event(0, part0)
    def mm(d, x, y, c): return f"v_mfma_f32_16x16x16_bf16 v[{d}:{d+3}], v[{x}:{x+1}], v[{y}:{y+1}], {c}"
    src = open("gen_v1.py").read()
    def v1_part(name, nxt):
        body = src[src.index(f"    def {name}():"):src.index(nxt)]
        env = dict(globals(), a=a, mm=mm, QP=QP, KP=KP, VP=VP, vm=vm)
        return body, env
    import textwrap
    body, env = v1_part("part1", "    b_event(vm, 1, part1)")
    exec(textwrap.dedent(body), env); b_event(1, env["part1"])
    body, env = v1_part("part2", "    b_event(vm, 2, part2)")
    for l in ("v_mul_f32 v88, {fbits(-1.4426950408889634)}, v88", "v_exp_f32 v88, v88", "v_add_f32 v88, 1.0, v88", "v_rcp_f32 v88, v88"):
        assert l in body; body = body.replace(l, "")
    exec(textwrap.dedent(body), env); env["part2"]()
    body, env = v1_part("part3", "    b_event(vm, 3, part3)")
    body = body.replace('a("s_nop 0")', 'for tl in range(4): a(f"v_mul_f32 v{76+tl}, v{76+tl}, v{72+tl}")')
    exec(textwrap.dedent(body), env); env["part3"]()
    st.stamp(6)
    if L["aord"] > 1: L["b_late"](vm, L["aord"] - 1, swap)
    else:
        L["publish"](vm)
        for r in range(0 if L['aord'] else 2, 3): b_event(r, None)
    a("s_cmp_ge_u32 s3, 4\ns_cbranch_scc1 L_p2_g1")

def phase2(a, st, L):
    br, spin, depth, swap = L["br"], L["spin"], L["depth"], L["swap"]
    def poll(lab, v, issued):
        if issued: a(f"s_branch {lab}_c")
        a(f"""{lab}:
            buffer_load_dword v{vEP}, v{v}, s[{SWS}:{SWS+3}], 0 offen sc1
            s_add_u32 s{sSpin}, s{sSpin}, 1
            s_cmp_ge_u32 s{sSpin}, {spin}
            s_cbranch_scc1 {lab}_d
            {lab}_c:
            s_waitcnt vmcnt(0)
            v_cmp_ne_u32 vcc, 1, v{vEP}
            s_cbranch_vccnz {lab}
            {lab}_d:""")
    for G in range(2):
        n1 = (8, 4)[G]
        a(f"L_p2_g{G}:")
        poll(f"L_pa{G}", vF1, False)
        st.stamp(8)
        vm = VM(a); S = dict(free=[8, 16, 24, 32], buf={}, nxt=0)
        def a_load():
            t = S["nxt"]; b = S["free"].pop(0); S["buf"][t] = b; S["nxt"] += 1
            a(f"""v_readlane_b32 s{t1}, v{vTA}, {t}
                s_mov_b32 s{sA0}, s{t1}
                buffer_load_dwordx4 v[{b}:{b+3}], v{vA0}, s[{SWS}:{SWS+3}], s{sA0} offen sc1
                buffer_load_dwordx4 v[{b+4}:{b+7}], v{vA1}, s[{SWS}:{SWS+3}], s{sA0} offen sc1""")
            vm.op(f"A{t}", 2)
        def step(t, lim):
            vm.wait(f"A{t}"); b = S["buf"][t]
            for ct, tt in ((0, 0), (1, 0), (0, 1), (1, 1)):
                c = 40 + 16 * (2 * ct + tt); w = BREG + 8 * t + 4 * ct; x = b + 4 * tt
                a(f"v_mfma_f32_32x32x16_bf16 v[{c}:{c+15}], v[{w}:{w+3}], v[{x}:{x+3}], {f'v[{c}:{c+15}]' if t else '0'}")
            S["free"] += [b, BREG + 8 * t]
            while S["nxt"] < min(lim, t + 1 + depth) and S["free"]: a_load()
        p2 = f"buffer_load_dword v{vEP}, v{vF2}, s[{SWS}:{SWS+3}], 0 offen sc1"
        if G == 0:
            a(f"""s_cmp_lg_u32 s3, 0
                s_cbranch_scc1 L_ng2
                s_lshl_b32 s{t1}, s{sP}, 10
                s_add_u32 s{t1}, s{t1}, s{sJ2}
                s_lshl_b32 s{t1}, s{t1}, 2
                s_add_u32 s{t1}, s{t1}, {WS_G}
                v_lshlrev_b32 v{vE}, 2, v0
                buffer_load_dword v{vE}, v{vE}, s[{SWS}:{SWS+3}], s{t1} offen sc1
                L_ng2:""")
        for _ in range(4): a_load()
        a(p2); vm.op("P")
        for r in range(3, 6):
            br(r, swap); a(f"s_waitcnt lgkmcnt({3 if r < 5 else 0})")
        a.srd(SM, 18, 1024)
        for t in range(4): step(t, n1)
        if G == 0:
            vm.wait("P")
            a(f"v_cmp_ne_u32 vcc, 1, v{vEP}\ns_cbranch_vccnz L_slow0")
            import copy
            S0, q0 = copy.deepcopy(S), list(vm.q)
            for t in range(4, 8): step(t, 18)
            S1, q1 = copy.deepcopy(S), list(vm.q)
            a("s_branch L_mrg0\nL_slow0:")
            S.update(S0); vm.q = q0
            a(p2); vm.op("P")
            for t in range(4, 8): step(t, 8)
            st.stamp(9)
            poll("L_pb0", vF2, True)
            st.stamp(10)
            for t in range(8, S1["nxt"]):
                S["free"] = [S1["buf"][t]]; a_load()
            S.update(S1); vm.q = q1
            a("L_mrg0:")
        else:
            st.stamp(9)
            poll("L_pb1", vF2, True); vm.q = []
            st.stamp(10)
            while S["free"] and S["nxt"] < n1 + max(depth, 8): a_load()
        for t in range(n1, 18):
            step(t, 18)
            if t == n1: a(f"buffer_load_dwordx4 v[2:5], v{vOC}, s[{SM}:{SM+3}], 0 offen"); vm.op("b2")
        if G == 0: a("s_branch L_red")
    a("L_red:")
    st.stamp(11)
    a(f"""v_and_b32 v104, 31, v0
        v_lshrrev_b32 v105, 5, v0
        v_and_b32 v106, 7, v0
        v_xor_b32 v105, v105, v106
        v_lshlrev_b32 v105, 4, v105
        v_lshl_add_u32 v105, v104, 8, v105
        v_add_u32 v105, s{sW6}, v105
        v_mov_b32 v107, 43008
        v_cmp_le_u32 vcc, 24, v104
        v_add_u32 v112, {8192+43008}, v105
        v_lshrrev_b32 v120, 3, v0
        v_cndmask_b32 v108, 0, v107, vcc
        v_cmp_le_u32 vcc, 16, v104
        v_add_u32 v108, v108, v105
        v_lshlrev_b32 v121, 1, v106
        v_cndmask_b32 v107, 0, v107, vcc
        v_add_u32 v112, v112, v107""")
    for b in (108, 112): a(f"v_xor_b32 v{b+1}, 32, v{b}\nv_xor_b32 v{b+2}, 64, v{b}\nv_xor_b32 v{b+3}, 0x60, v{b}")
    for ct, tt in ((0, 0), (1, 0), (0, 1), (1, 1)):
        for jj in range(4):
            c = 40 + 16 * (2 * ct + tt) + 4 * jj
            if c == 88: a("s_waitcnt lgkmcnt(4)")
            a(f"ds_write_b128 v{108+4*tt+jj}, v[{c}:{c+3}] offset:{ct*128}")
    a(f"""v_xor_b32 v121, v121, v120
        v_lshlrev_b32 v121, 4, v121
        s_lshl_b32 s{t1}, s3, 3
        v_add_u32 v120, s{t1}, v120
        v_lshl_add_u32 v116, v120, 8, v121
        s_mul_i32 s{t1}, s3, 43
        s_lshr_b32 s{t1}, s{t1}, 7
        s_mul_i32 s{t1}, s{t1}, 43008
        v_add_u32 v116, s{t1}, v116
        v_xor_b32 v117, 16, v116
        v_lshlrev_b32 v118, 2, v120
        v_add_u32 v118, {LDS_G}, v118
        v_add_u32 v120, s{sJ2}, v120
        v_lshl_add_u32 v120, v120, 1, s{sP}
        v_lshl_add_u32 v120, v120, 10, v{vOC}
        s_cmp_lg_u32 s3, 0
        s_cbranch_scc1 L_ng3
        v_add_f32 v{vE}, 1.0, v{vE}
        v_lshlrev_b32 v119, 2, v0
        v_rcp_f32 v{vE}, v{vE}
        v_add_u32 v119, {LDS_G}, v119
        ds_write_b32 v119, v{vE}
        L_ng3:
        s_waitcnt vmcnt(0)""")
    for m in range(4): a(f"v_lshlrev_b32 v{8+2*m}, 16, v{2+m}\nv_and_b32 v{9+2*m}, 0xffff0000, v{2+m}")
    a("s_waitcnt lgkmcnt(0)\ns_barrier")
    st.stamp(12)
    a("ds_read_b32 v121, v118")
    def rd(w):
        for e in range(2): a(f"ds_read_b128 v[{128+8*w+4*e}:{131+8*w+4*e}], v{116+e} offset:{w*6144}")
    for w in range(7): rd(w)
    P = lambda b, i: f"v[{b+2*i}:{b+2*i+1}]"
    for w in range(8):
        a(f"s_waitcnt lgkmcnt({12 if w == 0 else 2*(7-w)})")
        if w == 0: rd(7)
        for i in range(4): a(f"v_pk_add_f32 {P(8,i)}, {P(8,i)}, {P(128+8*w,i)}")
    for i in range(8): a(f"v_mul_f32 v{8+i}, v{8+i}, v121")
    for i in range(4): a(f"v_cvt_pk_bf16_f32 v{16+i}, v{8+2*i}, v{9+2*i}")
    a(f"buffer_store_dwordx4 v[16:19], v120, s[{SO}:{SO+3}], 0 offen")
    if st.en:
        a("s_waitcnt vmcnt(0)")
        st.stamp(13)
        a(f"s_lshl_b32 s{t1}, s2, 3\ns_add_u32 s{t1}, s{t1}, s3")
        a(f"s_mov_b32 s{SWS+2}, 0x10000000")
        st.finish(SWS, t1, 0x8000000, 8, 9)
```

```python
import sys
from g2a import *
vX, vX2, vW = 33, 34, 35
LDS_E = LDS_G + 256
LOG2E = 1.4426950408889634

def weave(main, fill, start=1, end=None):
    end = len(main) if end is None else end
    per = [[] for _ in main]; n = end - start + 1
    for i, f in enumerate(fill): per[start - 1 + i * n // len(fill)].append(f)
    out = []
    for m, p in zip(main, per): out.append(m); out += p
    return out

def gen(out="k2.s", stamps=False, spin=1 << 18, npre=3, rot=1, swap=1, shifts=(0, 0, 0, 9), pb=4, pb0=13, depth=6, plain1=0, prio=1,
        fplan=None, fast=1, pbar=1, fs=7, aord=1, ford=(0, 0), exp=()):
    a = Asm(); st = Stamps(a, STB, 14, stamps)
    def emit(vm, items):
        for it in items:
            if isinstance(it, tuple): a(it[0]); vm.op(it[1])
            else: a(it)
    a("s_cmp_ge_u32 s2, 256\ns_cbranch_scc1 L_end")
    a("s_load_dwordx16 s[4:19], s[0:1], 0\ns_load_dwordx8 s[20:27], s[0:1], 64")
    st.start()
    a(f"""v_lshrrev_b32 v1, 6, v0
        v_and_b32 v0, 63, v0
        s_and_b32 s{sQ}, s2, 3
        v_readfirstlane_b32 s3, v1
        s_bfe_u32 s{sP}, s2, 0x10002
        s_lshr_b32 s{sSlot}, s2, 3
        v_lshrrev_b32 v8, 3, v0
        v_and_b32 v9, 7, v0
        v_lshrrev_b32 v10, 4, v0
        s_and_b32 s{t0}, s3, 1
        s_lshl_b32 s{t1}, s{t0}, 2
        v_add_u32 v11, s{t1}, v10
        v_xor_b32 v11, v11, v9
        v_lshlrev_b32 v11, 4, v11
        s_lshl_b32 s{t1}, s3, 3
        v_add_u32 v12, s{t1}, v8
        v_lshl_add_u32 v{vX}, v12, 11, v11
        v_and_b32 v13, 1, v10
        s_lshl_b32 s{sWL}, s3, 10
        s_mul_i32 s{sW6}, s3, 6144
        s_mov_b32 s{sSpin}, 0
        s_cmp_ge_u32 s{sSlot}, 14
        s_cbranch_scc1 L_attn""")

    def x_setup(stride):
        a(f"""s_lshl_b32 s{t1}, s{sJ0}, 1
            s_add_u32 s{t1}, s{t1}, s{sP}
            s_lshl_b32 s{t1}, s{t1}, 10
            v_add_u32 v{vX}, s{t1}, v{vX}
            v_add_u32 v{vX2}, 0x20000, v{vX}
            s_add_u32 s{sRot}, s{sR}, s{sC}
            s_and_b32 s{sRot}, s{sRot}, 7
            s_lshl_b32 s{sKX}, s{sRot}, 7
            s_mul_i32 s{sKW}, s{sKX}, {stride//2}""")
    def d_dma(s, nsub, sub, stride):
        b = (s % 3) * SLOT; tag = f"D{s}"
        g = [(f"s_add_u32 m0, s{sWL}, {b}\ns_nop 0\nbuffer_load_dwordx4 v{vX}, s[{SX}:{SX+3}], s{sKX} offen lds", tag),
             (f"s_add_u32 m0, s{sWL}, {b+8192}\ns_nop 0\nbuffer_load_dwordx4 v{vX2}, s[{SX}:{SX+3}], s{sKX} offen lds", tag)]
        for t in range(nsub):
            f = [f"s_add_u32 s{sKX}, s{sKX}, 128", f"s_and_b32 s{sKX}, s{sKX}, 1023"][t] if t < 2 else "s_nop 0"
            l = (f"s_add_u32 m0, s{sWL}, {b+16384+t*(8192-sub)}\n{f}\n"
                 f"buffer_load_dwordx4 v{vW}, s[{SW}:{SW+3}], s{sKW} offen offset:{t*sub} lds")
            if t == nsub - 1: l += f"\ns_mul_i32 s{sKW}, s{sKX}, {stride//2}"
            g.append((l, tag))
        return g
    def bd(r): return [] if ("nob35" in exp and r >= 3) or "nob" in exp else [(x + "\n" + y, f"B{r}") for x, y in b_dma(r)]
    def srds(wbase, wbytes, mbase, mbytes):
        a("s_waitcnt lgkmcnt(0)")
        a.srd(SX, 4, 2097152); a.srd(SW, wbase, wbytes); a.srd(SM, mbase, mbytes)
    def ep_addr():
        a(f"s_cmp_lg_u32 s3, 0\ns_cselect_b32 s{t1}, {OOB}, 0\nv_and_b32 v{vEP}, 7, v0\nv_lshl_add_u32 v{vEP}, v{vEP}, 2, s{t1}")
    ep_load = (f"buffer_load_dword v{vEP}, v{vEP}, s[{SD}:{SD+3}], 0 offen sc1", "ep")
    def ep_check(name):
        a(f"""s_cmp_lg_u32 s3, 0
            s_cbranch_scc1 {name}_e1
            {name}_e0:
            v_cmp_ne_u32 vcc, 1, v{vEP}
            s_cbranch_vccz {name}_e1
            s_add_u32 s{sSpin}, s{sSpin}, 1
            s_cmp_ge_u32 s{sSpin}, {spin}
            s_cbranch_scc1 {name}_e1
            v_and_b32 v{vEP}, 7, v0
            v_lshlrev_b32 v{vEP}, 2, v{vEP}
            buffer_load_dword v{vEP}, v{vEP}, s[{SD}:{SD+3}], 0 offen sc1
            s_waitcnt vmcnt(0)
            s_branch {name}_e0
            {name}_e1:""")
    def publish(vm):
        a(f"v_mov_b32 v{vEP}, 1")
        vm.wait("st")
        a(f"s_mov_b64 exec, 1\nbuffer_store_dword v{vEP}, off, s[{SWS}:{SWS+3}], s{sPub} sc1\ns_mov_b64 exec, -1")
        vm.op("pub"); st.stamp(7)
    def br(r, sw):
        sh = sorted(set(shifts if sw else shifts[:2])); le = a.label("L_sw"); ls = [a.label("L_sw") for _ in sh]
        for v, l in list(zip(sh, ls))[1:]: a(f"s_cmp_eq_u32 s{sSwap}, {v}\ns_cbranch_scc1 {l}")
        for v, l in zip(sh, ls):
            a(f"{l}:")
            for x in b_reads(r, v): a(x)
            if v != sh[-1]: a(f"s_branch {le}")
        a(f"{le}:")
    def set_shift():
        a(f"s_lshl_b32 s{t0}, s{sJ2}, 3\ns_lshr_b32 s{sSwap}, {sum(v << (8 * i) for i, v in enumerate(shifts))}, s{t0}\ns_and_b32 s{sSwap}, s{sSwap}, 0xff")

    vm = VM(a)
    a(f"""s_mul_i32 s{t1}, s{sQ}, 14
        s_add_u32 s{t1}, s{t1}, s{sSlot}
        s_lshr_b32 s{sC}, s{t1}, 3
        s_and_b32 s{sR}, s{t1}, 7
        s_lshl_b32 s{sJ0}, s{sR}, 7
        v_lshlrev_b32 v14, 2, v13
        v_xor_b32 v14, v14, v9
        v_lshlrev_b32 v14, 4, v14
        s_movk_i32 s{t1}, 3584
        v_mad_u32_u24 v{vW}, v12, s{t1}, v14
        s_lshl_b32 s{t1}, s{sC}, 9
        v_add_u32 v{vW}, s{t1}, v{vW}
        s_lshr_b32 s{t2}, s3, 1
        s_lshl_b32 s{t2}, s{t2}, 7
        s_add_u32 s{t1}, s{t1}, s{t2}
        v_lshrrev_b32 v14, 5, v0
        v_lshl_add_u32 v21, v14, 4, s{t1}""")
    x_setup(3584)
    srds(12, 1835008, 14, 3584)
    D = [d_dma(s, 4, 128, 3584) for s in range(8)]
    a(f"s_cmp_ge_u32 s2, 8\ns_cbranch_scc1 L_rf")
    a.srd(SWS, 26, WS_SIZE)
    a(f"""s_lshl_b32 s{t1}, s2, 3
        s_add_u32 s{t1}, s{t1}, s3
        s_mul_i32 s{t1}, s{t1}, {34 << fs}
        s_add_u32 s{t1}, s{t1}, {WS_F}
        v_min_u32 v20, 33, v0
        v_lshlrev_b32 v20, {fs}, v20
        v_mov_b32 v16, 0
        buffer_store_dword v16, v20, s[{SWS}:{SWS+3}], s{t1} offen sc1
        L_rf:""")
    emit(vm, D[0])
    for i in range(4): a(f"buffer_load_dwordx4 v[{104+4*i}:{107+4*i}], v21, s[{SM}:{SM+3}], 0 offen offset:{32*i}")
    vm.op("b1", 4)
    if pbar: a("s_barrier")
    emit(vm, D[1][:npre])
    st.stamp(3)
    mod7(a, sCT, sJ2, sSlot)
    set_shift()
    late_setup(a, rot, fs)
    ep_addr()
    a(f"""s_and_b32 s{t0}, s3, 1
        s_lshl_b32 s{t1}, s{t0}, 13
        v_and_b32 v17, 31, v0
        v_bfe_u32 v18, v0, 1, 3
        v_lshrrev_b32 v19, 5, v0
        v_xor_b32 v18, v18, v19
        v_lshlrev_b32 v18, 4, v18
        v_lshl_add_u32 v18, v17, 7, v18
        v_add_u32 v21, s{t1}, v18
        v_xor_b32 v22, 32, v21
        v_xor_b32 v23, 64, v21
        v_xor_b32 v24, 0x60, v21
        v_and_b32 v17, 1, v15
        v_lshrrev_b32 v18, 1, v15
        v_lshl_add_u32 v17, v17, 1, v18
        v_lshl_add_u32 v17, v17, 3, v14
        s_lshr_b32 s{t1}, s3, 1
        s_lshl_b32 s{t2}, s{t1}, 13
        s_add_u32 s{t2}, s{t2}, 16384
        v_add_u32 v25, s{t2}, v17
        v_xor_b32 v26, 64, v25""")
    for i in range(6): a(f"v_add_u32 v{27+i}, {2*SLOT}, v{21+i}")
    a(f"""s_lshl_b32 s{t2}, s{sP}, 4
        s_lshl_b32 s{t3}, s{sR}, 1
        s_add_u32 s{t2}, s{t2}, s{t3}
        s_add_u32 s{t2}, s{t2}, s{t0}
        s_and_b32 s{t1}, s{t1}, 1
        s_lshl_b32 s{t3}, s{sC}, 1
        s_add_u32 s{t1}, s{t1}, s{t3}
        s_lshr_b32 s{t3}, s3, 2
        s_lshl_b32 s{t4}, s{t3}, 4
        s_add_u32 s{t4}, s{t4}, s{t1}
        s_lshl_b32 s{t5}, s{t2}, 5
        s_add_u32 s{t4}, s{t4}, s{t5}
        s_lshl_b32 s{t4}, s{t4}, {fs}
        s_add_u32 s{sPub}, s{t4}, {WS_F}
        s_mul_i32 s{t2}, s{t2}, 288
        s_mul_i32 s{t3}, s{t3}, 56
        s_lshl_b32 s{t1}, s{t1}, 2
        s_add_u32 s{t2}, s{t2}, s{t3}
        s_add_u32 s{t2}, s{t2}, s{t1}
        s_add_u32 s{t2}, s{t2}, 32
        s_lshl_b32 s{t2}, s{t2}, 10
        v_lshl_add_u32 v{vST}, v0, 4, s{t2}""")
    vm.wait("b1")
    a("s_barrier")
    st.stamp(4)
    def f_reads(n):
        if n >= 32: return []
        s, kk = n >> 2, n & 3; B = 104 + 16 * (n & 3); sl = s % 3
        o = SLOT if sl == 1 else 0; r = 27 if sl == 2 else 21; g = []
        for ct in range(2):
            for e in range(2):
                d = B + 8 + 4 * ct + 2 * e
                g.append(f"ds_read_b64_tr_b16 v[{d}:{d+1}], v{r+4+ct} offset:{o+kk*2048+e*512}")
            g.append(f"ds_read_b128 v[{B+4*ct}:{B+4*ct+3}], v{r+kk} offset:{o+ct*4096}")
        return g
    def f_mfma(n):
        B = 104 + 16 * (n & 3); g = []
        for ct, tt in ((0, 0), (1, 0), (0, 1), (1, 1)):
            c = 40 + 16 * (2 * ct + tt); w = B + 8 + 4 * ct; x = B + 4 * tt
            g.append(f"v_mfma_f32_32x32x16_bf16 v[{c}:{c+15}], v[{w}:{w+3}], v[{x}:{x+3}], v[{c}:{c+15}]")
        return g
    for l in f_reads(1): a(l)
    for ct in range(2):
        for u in range(2):
            for m in range(4):
                src = 104 + 4 * (2 * ct + u) + m
                for tt in range(2):
                    d = 40 + 16 * (2 * ct + tt) + 8 * u + 2 * m
                    a(f"v_lshlrev_b32 v{d}, 16, v{src}\nv_and_b32 v{d+1}, 0xffff0000, v{src}")
    for l in f_reads(0): a(l)
    a(f"""s_or_b32 s{t1}, s{sSlot}, s3
        s_cbranch_scc1 L_rd
        v_mov_b32 v8, 1
        s_lshl_b32 s{t1}, s2, 2
        s_mov_b64 exec, 1
        buffer_store_dword v8, off, s[{SD}:{SD+3}], s{t1} sc1
        s_mov_b64 exec, -1
        L_rd:""")
    plan = {n: [] for n in range(32)}
    plan[0] = D[1][npre:]; plan[1] = D[2][:3]; plan[2] = D[2][3:]; plan[3] = D[3][:3]; plan[4] = D[3][3:]
    fplan = fplan or (3, 3, 0, 0)
    for s in range(1, 8):
        g = D[s + 3] if s < 5 else bd(s - 5); fp = fplan if s < 7 else (3, 3, 0, 0); i = 0
        for j, c in enumerate(fp): plan[min(31, 4 * s + 2 + j)] += g[i:i + c]; i += c
    plan[13].append(ep_load)
    for n in range(32):
        s, kk = n >> 2, n & 3; m = f_mfma(n); r = f_reads(n + 2)
        a(f"s_waitcnt lgkmcnt({0 if n in (0, 31) else 6})")
        a(m[0])
        if kk == 2:
            a(f"s_waitcnt vmcnt({vm.cnt(f'D{s+1}')}) lgkmcnt(0)" if s < 7 else "s_waitcnt lgkmcnt(0)")
            if s == 5: ep_check("L_f")
            a("s_barrier")
        d = plan[n]; h = (len(d) + 1) // 2
        emit(vm, r[:3] + [m[1]] + r[3:] + d[:1] + [m[2]] + d[1:h + 1] + [m[3]] + d[h + 1:])
    st.stamp(5)
    C = 2.302208198
    def gelu(vm, fi, plain):
        tt, ct, u = fi >> 2, (fi >> 1) & 1, fi & 1
        c = 40 + 16 * (2 * ct + tt) + 8 * u; T = 12; O = 20 + 4 * (fi % 4)
        P = lambda i, b: f"v[{b+2*i}:{b+2*i+1}]"
        if plain:
            for i in range(8): a(f"v_mul_f32 v{T+i}, v{c+i}, v{c+i}")
            for i in range(8): a(f"v_fma_f32 v{T+i}, v{T+i}, v8, v10")
            for i in range(8): a(f"v_mul_f32 v{T+i}, v{T+i}, v{c+i}")
        else:
            for i in range(4): a(f"v_pk_mul_f32 {P(i,T)}, {P(i,c)}, {P(i,c)}")
            for i in range(4): a(f"v_pk_fma_f32 {P(i,T)}, {P(i,T)}, v[8:9], v[10:11]")
            for i in range(4): a(f"v_pk_mul_f32 {P(i,T)}, {P(i,T)}, {P(i,c)}")
        for i in range(8): a(f"v_exp_f32 v{T+i}, v{T+i}")
        if plain:
            for i in range(8): a(f"v_add_f32 v{T+i}, 1.0, v{T+i}")
        else:
            for i in range(4): a(f"v_pk_add_f32 {P(i,T)}, {P(i,T)}, 1.0 op_sel_hi:[1,0]")
        for i in range(8): a(f"v_rcp_f32 v{T+i}, v{T+i}")
        if plain:
            for i in range(8): a(f"v_mul_f32 v{T+i}, v{T+i}, v{c+i}")
        else:
            for i in range(4): a(f"v_pk_mul_f32 {P(i,T)}, {P(i,T)}, {P(i,c)}")
        for i in range(4): a(f"v_cvt_pk_bf16_f32 v{O+i}, v{T+2*i}, v{T+2*i+1}")
        if "nost" in exp: return
        a(f"buffer_store_dwordx4 v[{O}:{O+3}], v{vST}, s[{SWS}:{SWS+3}], {'s%d' % sFR if tt else '0'} offen offset:{(2*ct+u)*1024} sc1")
        vm.op("st")
    a(f"""v_mov_b32 v8, {fbits(-C*0.044715)}
        v_mov_b32 v9, {fbits(-C*0.044715)}
        v_mov_b32 v10, {fbits(-C)}
        v_mov_b32 v11, {fbits(-C)}
        s_cmp_ge_u32 s3, 4
        s_cbranch_scc1 L_f_g1""")
    q0 = list(vm.q)
    if prio: a("s_setprio 2")
    def b_late(vm, mode, sw):
        if mode == 1:
            for r in range(3): vm.wait(f"B{r}"); br(r, sw); a("s_waitcnt lgkmcnt(0)"); emit(vm, bd(r + 3))
            publish(vm)
        else:
            for r in range(3): vm.wait(f"B{r}"); br(r, sw); a(f"s_waitcnt lgkmcnt({3 if r < 2 else 0})")
            publish(vm)
            for r in range(3): emit(vm, bd(r + 3))
    if ford[0]:
        a("s_nop 7\ns_nop 3")
        for fi in range(8): gelu(vm, fi, 0)
        st.stamp(6)
        b_late(vm, ford[0], 0)
    else:
        vm.wait("B0"); br(0, 0); a("s_nop 4")
        pend = []
        for fi in range(8):
            if fi in (1, 3): vm.wait(f"B{(fi+1)//2}"); br((fi + 1) // 2, 0)
            gelu(vm, fi, 0)
            if fi in (0, 1, 3): a("s_waitcnt lgkmcnt(0)"); pend += bd(3 + (fi + 1) // 2)
            if fi < 7: emit(vm, pend[:3]); pend = pend[3:]
        st.stamp(6)
        publish(vm)
    if prio: a("s_setprio 0")
    a("s_branch L_p2_g0")
    a("L_f_g1:")
    vm.q = q0
    if prio: a("s_setprio 1")
    if ford[1]:
        a("s_nop 7\ns_nop 3")
        for fi in range(8): gelu(vm, fi, plain1)
        st.stamp(6)
        b_late(vm, ford[1], 0)
    else:
        for r in range(3):
            vm.wait(f"B{r}"); br(r, 0); a("s_waitcnt lgkmcnt(0)"); emit(vm, bd(r + 3))
        for fi in range(8): gelu(vm, fi, plain1)
        st.stamp(6)
        publish(vm)
    a("s_branch L_p2_g1")
    from g2b import attention, phase2
    attention(a, st, dict(locals()))
    phase2(a, st, dict(locals()))
    a("L_end:\ns_endpgm")
    T = a.text()
    if "nopoll" in exp: T = T.replace("v_cmp_ne_u32 vcc, 1, v7", "v_cmp_ne_u32 vcc, v7, v7")
    if "plainst" in exp: T = "\n".join(l.replace(" sc1", "") if "buffer_store_dwordx4" in l else l for l in T.split("\n"))
    if "plainld" in exp: T = "\n".join(l.replace(" sc1", "") if "buffer_load_dwordx4" in l else l for l in T.split("\n"))
    open(out, "w").write(make_file(["; @launch grid=(256,1,1) block=(512,1,1) lds=163840"], [(NAME + "_kernel", T, 256, 256)]))

if __name__ == "__main__":
    gen("k2.s"); gen("k2s.s", stamps=True)
```
